```python
import torch

def _softmax(x, axis=-1):
    return torch.softmax(x, dim=axis)
def _gelu(x):
    return torch.nn.functional.gelu(x, approximate="tanh")
def _silu(x):
    return torch.nn.functional.silu(x)
def _sigmoid(x):
    return torch.sigmoid(x)
def _layernorm(x, axis=-1, eps=1e-5):
    m = x.mean(dim=axis, keepdim=True)
    v = x.var(dim=axis, keepdim=True, unbiased=False)
    return (x - m) / torch.sqrt(v + eps)
def _scatter_add(tgt, idx, src, axis=0):
    return tgt.clone().index_add_(axis, idx, src)
def _segment_sum(src, seg, n):
    out = torch.zeros((n,) + src.shape[1:], dtype=src.dtype)
    return out.index_add_(0, seg, src)
def _pad(x, pw):
    flat = tuple(v for pair in reversed(pw) for v in pair)
    return torch.nn.functional.pad(x, flat)

kernel_name = 'parallel_sum__ssm_conv_h3__mixer_channel_mlp__prompt'

def setup_inputs():

    _w = (lambda a: (lambda t: t.to(torch.bfloat16) if t.is_floating_point() else t)(torch.as_tensor(a)))
    def _A_setup():
        B, S, D = 1, 2048, 512
        ks = 4
        return {
            "q": _w((lambda *s: torch.randn(*s, dtype=torch.bfloat16) * 0.05)(B, S, D)),
            "k": _w((lambda *s: torch.randn(*s, dtype=torch.bfloat16) * 0.2)(B, S, D)),
            "v": _w((lambda *s: torch.randn(*s, dtype=torch.bfloat16) * 0.2)(B, S, D)),
            "shift_k": _w((lambda *s: torch.randn(*s, dtype=torch.bfloat16) * 0.2)(D, ks) * 0.5),
            "ssm_k": _w((lambda *s: torch.randn(*s, dtype=torch.bfloat16) * 0.8)(D, S) * (1.0 / S ** 0.5)),
            "ssm_D": _w((lambda *s: torch.randn(*s, dtype=torch.bfloat16) * 0.2)(D)),
        }
    _A_in = _A_setup()

    def _B_setup():
        B, S, D, F = 1, 2048, 512, 1376
        return {
            "x": _w((lambda *s: torch.randn(*s, dtype=torch.bfloat16) * 0.05)(B, S, D)),
            "w1": _w((lambda *s: torch.randn(*s, dtype=torch.bfloat16) * 0.8)(D, F) * (D ** -0.5)),
            "b1": _w((lambda *s: torch.randn(*s, dtype=torch.bfloat16) * 0.4)(F)),
            "w2": _w((lambda *s: torch.randn(*s, dtype=torch.bfloat16) * 0.05)(F, D) * (F ** -0.5)),
            "b2": _w((lambda *s: torch.randn(*s, dtype=torch.bfloat16) * 0.05)(D)),
        }
    _B_in = _B_setup()

    return {
        "A_q": _A_in["q"],
        "A_k": _A_in["k"],
        "A_v": _A_in["v"],
        "A_shift_k": _A_in["shift_k"],
        "A_ssm_k": _A_in["ssm_k"],
        "A_ssm_D": _A_in["ssm_D"],
        "B_x": _B_in["x"],
        "B_w1": _B_in["w1"],
        "B_b1": _B_in["b1"],
        "B_w2": _B_in["w2"],
        "B_b2": _B_in["b2"],
    }

def reference(A_q, A_k, A_v, A_shift_k, A_ssm_k, A_ssm_D, B_x, B_w1, B_b1, B_w2, B_b2):
    def _A_ref(q, k, v, shift_k, ssm_k, ssm_D):
        B, S, D = q.shape
        ks = shift_k.shape[-1]
        k_pad = _pad(k, ((0, 0), (ks - 1, 0), (0, 0)))
        k_shift = torch.zeros_like(k)
        for t in range(ks):
            k_shift = k_shift + k_pad[:, t:t + S, :] * shift_k[:, ks - 1 - t][None, None, :]
        kv = k_shift * v
        L = 2 * S
        kv_pad = _pad(kv, ((0, 0), (0, S), (0, 0)))
        kf_pad = _pad(ssm_k, ((0, 0), (0, S)))
        kv_f = (lambda x, axes=(-2,-1): torch.fft.rfft2(x.float(), dim=axes))(kv_pad[:, None, :, :], axes=(1, 2))
        kf_f = (lambda x, axes=(-2,-1): torch.fft.rfft2(x.float(), dim=axes))(kf_pad[:, None, :], axes=(1, 2))
        kf_f = (lambda x, *d: x.permute(*d))(kf_f, 1, 2, 0)
        y_f = kv_f * kf_f[None, :, :, :]
        y = (lambda x, s, axes=(-2,-1): torch.fft.irfft2(x, s=s, dim=axes).to(torch.bfloat16))(y_f, (1, L), axes=(1, 2))[:, 0, :S, :]
        y = y + kv * ssm_D[None, None, :]
        return q * y

    def _B_ref(x, w1, b1, w2, b2):
        y = _layernorm(x, axis=-1)
        h = _gelu(torch.einsum("bsd,df->bsf", y, w1) + b1)
        return torch.einsum("bsf,fd->bsd", h, w2) + b2

    x = A_q
    xn = _layernorm(x, axis=-1)
    return x + _A_ref(xn, A_k, A_v, A_shift_k, A_ssm_k, A_ssm_D) + _B_ref(xn, B_w1, B_b1, B_w2, B_b2)
```

```python
import re

REG = re.compile(r'\b([vas])(\d+)\b|\b([vas])\[(\d+):(\d+)\]|\b(vcc|exec|m0|vcc_lo|vcc_hi|exec_lo|exec_hi)\b')

def regs_of(txt):
    out = []
    for m in REG.finditer(txt):
        if m.group(1):
            out.append((m.group(1), int(m.group(2))))
        elif m.group(3):
            out += [(m.group(3), i) for i in range(int(m.group(4)), int(m.group(5)) + 1)]
        else:
            out.append((m.group(6).split('_')[0], 0))
    return out

TRANS = ('v_exp_f32', 'v_log_f32', 'v_rcp_f32', 'v_rsq_f32', 'v_sqrt_f32', 'v_sin_f32', 'v_cos_f32')

class Ins:
    def __init__(self, text):
        self.text = text
        t = text.split(';')[0].strip()
        self.op = t.split()[0] if t else ''
        rest = t[len(self.op):].strip()
        ops = [o.strip() for o in rest.split(',')] if rest else []
        self.ops = ops
        op = self.op
        self.is_label = op.endswith(':')
        self.is_dir = op.startswith('.')
        self.mfma = op.startswith('v_mfma')
        self.valu = op.startswith('v_') and not self.mfma
        self.dot = op.startswith('v_dot')
        self.trans = any(op.startswith(x) for x in TRANS)
        self.dpp = ('_dpp' in op) or ('quad_perm' in t) or ('row_' in t) or ('wave_sh' in t)
        self.permlane = op.startswith('v_permlane')
        self.rdlane = op.startswith('v_readfirstlane') or op.startswith('v_readlane')
        self.ds = op.startswith('ds_')
        self.vmem = op.startswith('buffer_') or op.startswith('global_')
        self.lds_dma = self.vmem and (t.endswith(' lds') or ' lds ' in t or '_lds_' in op)
        self.salu = op.startswith('s_')
        self.store = self.vmem and ('store' in op or 'atomic' in op)
        self.wide_store = self.store and ('x4' in op or 'x3' in op)
        w, r = [], []
        if self.mfma:
            w = regs_of(ops[0]); r = [x for o in ops[1:] for x in regs_of(o)]
            self.srcab = regs_of(ops[1]) + regs_of(ops[2]); self.srcc = regs_of(ops[3])
            self.passes = 8 if '32x32' in op else 4
        elif self.valu:
            if op.startswith('v_cmp'):
                w = regs_of(ops[0]); r = [x for o in ops[1:] for x in regs_of(o)]
            elif self.permlane:
                w = regs_of(ops[0]) + regs_of(ops[1]); r = list(w)
            else:
                w = regs_of(ops[0]); r = [x for o in ops[1:] for x in regs_of(o)]
                if op.startswith('v_fmac') or op.startswith('v_dot2c') or self.dpp:
                    r += w
                if '_co_' in op:
                    w += regs_of(ops[1])
        elif self.ds:
            if 'read' in op or 'bpermute' in op:
                w = regs_of(ops[0]); r = [x for o in ops[1:] for x in regs_of(o)]
            else:
                r = [x for o in ops for x in regs_of(o)]
        elif self.vmem:
            if self.store or self.lds_dma:
                r = [x for o in ops for x in regs_of(o)]
                if self.lds_dma: r.append(('m0', 0))
                if self.store:
                    self.data = regs_of(ops[0]) if op.startswith('buffer_') else regs_of(ops[1])
            else:
                w = regs_of(ops[0]); r = [x for o in ops[1:] for x in regs_of(o)]
        elif self.salu:
            if op.startswith(('s_cmp', 's_waitcnt', 's_nop', 's_barrier', 's_branch', 's_cbranch', 's_endpgm', 's_sleep', 's_setprio', 's_bitcmp')):
                r = [x for o in ops for x in regs_of(o)]
            else:
                w = regs_of(ops[0]) if ops else []; r = [x for o in ops[1:] for x in regs_of(o)]
        self.w, self.r = set(w), set(r)
    def states(self):
        if self.is_label or self.is_dir or not self.op: return 0
        if self.op == 's_nop': return int(self.ops[0], 0) + 1
        return 1

def need(p, c):
    n = 0
    vw = {x for x in p.w if x[0] in 'va'}
    sw = {x for x in p.w if x[0] in ('s', 'vcc')}
    if p.valu:
        if c.mfma and vw & c.r: n = max(n, 2)
        if c.valu and c.dpp and vw & c.r: n = max(n, 2)
        if c.permlane and vw & c.r: n = max(n, 2)
        if c.rdlane and vw & c.r: n = max(n, 1)
        if p.trans and c.valu and not c.trans and vw & c.r: n = max(n, 1)
        if p.trans and (c.ds or c.vmem) and vw & c.r: n = max(n, 1)
        if p.dot and (vw & (c.r | c.w)):
            if c.op == p.op:
                ab = set(regs_of(c.ops[1]) + regs_of(c.ops[2]))
                if vw & ab: n = max(n, 3)
            else:
                n = max(n, 3)
        if sw:
            if c.vmem and sw & c.r: n = max(n, 5)
            if c.valu and sw & c.r: n = max(n, 4 if c.rdlane else 2)
            if c.salu and (sw & c.r or (('vcc', 0) in sw and 'vcc' in c.op)): n = max(n, 2)
    if p.mfma:
        hi = {4: 8, 8: 12}[p.passes]
        if c.mfma:
            if vw & set(c.srcab): n = max(n, hi)
            if vw & set(c.srcc) and (set(c.srcc) != vw or c.passes != p.passes): n = max(n, hi - 2)
            if vw & c.w and not (vw & set(c.srcc)): n = max(n, hi - 2)
        elif (c.valu or c.ds or c.vmem) and vw & (c.r | c.w): n = max(n, hi)
        if c.valu and set(p.srcc) & c.w: n = max(n, p.passes - 1)
    if p.salu and ('m0', 0) in p.w and c.lds_dma: n = max(n, 1)
    if p.wide_store and set(p.data) & c.w: n = max(n, 2 if c.valu else 1)
    return n

class Asm:
    def __init__(self):
        self.lines = []
    def __call__(self, text):
        for l in text.split('\n'):
            l = l.strip()
            if l: self.lines.append(l)
    def finish(self):
        out = []
        nops = 0
        for l in self.lines:
            c = Ins(l)
            if c.op and not c.is_label and not c.is_dir:
                dist = 0; req = 0
                for p in reversed(out):
                    if dist >= 20: break
                    if p.op in ('s_branch', 's_endpgm'): break
                    k = need(p, c) - dist
                    if k > req: req = k
                    dist += p.states()
                if req > 0:
                    out.append(Ins(f's_nop {req-1}')); nops += 1
            out.append(c)
        self.nops = nops
        return '\n'.join(('' if (i.is_label or i.is_dir) else '    ') + i.text for i in out) + '\n'
```

```python
import sys, math, struct
from asmlib import Asm, regs_of

NAME = "parallel_sum__ssm_conv_h3__mixer_channel_mlp__prompt"
S0, S1, S2, S3, S4 = 0, 32768, 65536, 98304, 131072
U_OFF = 0
Z_OFF = 0x200000; Z_PITCH = 8448
H_OFF = 0x420000
MB_OFF = 0x9A0000
WS_SIZE = 0x9C0000
DIAG_OFF = 0xA00000
OOB = 0x7F000000
SJ = [(43 * j + 5) >> 3 for j in range(9)]
def blk_of_slot(q):
    if q < 32:
        return SJ[(q >> 1) & 7] + 2 * (q >> 4) + (q & 1)
    l = []
    for j in range(8):
        l += list(range(SJ[j] + 4, SJ[j + 1]))
    return l[q - 32]
assert sorted(blk_of_slot(q) for q in range(43)) == list(range(43))
def lds_of_slot(q):
    return 4096 * q if q < 40 else 4096 * (q - 40)
def f2u(x): return struct.unpack('<I', struct.pack('<f', x))[0]
def vr(a, n): return f"v[{a}:{a+n-1}]" if n > 1 else f"v{a}"

class Track:
    def __init__(self, a, name, maxc):
        self.a, self.name, self.maxc, self.q = a, name, maxc, []
    def issue(self, text, tag):
        self.a(text); self.q.append(tag)
    def wait(self, *tags):
        idx = -1
        for i, t in enumerate(self.q):
            if t in tags: idx = i
        if idx < 0: return
        n = len(self.q) - 1 - idx
        n = min(n, self.maxc)
        self.a(f"s_waitcnt {self.name}({n})")
        self.q = self.q[len(self.q) - n:] if n else []
    def drain(self):
        self.a(f"s_waitcnt {self.name}(0)"); self.q = []

def gen(diag=False, opt=None):
    opt = opt or {}
    a = Asm()
    nst = {'H': 0, 'M': 0}
    names = {'H': [], 'M': []}
    def stamp(role, name):
        if not diag: return
        i = nst[role]; nst[role] += 1
        assert i < 15
        names[role].append(name)
        a(f"s_memtime s[{72+2*i}:{73+2*i}]")
    def srd(base, ptr, size):
        a(f"s_mov_b32 s{base}, s{ptr}\ns_mov_b32 s{base+1}, s{ptr+1}\ns_mov_b32 s{base+2}, {size:#x}\ns_mov_b32 s{base+3}, 0x20000")
    WS, W2, RK, RV, W1, RX, RO, RH = 40, 44, 48, 52, 56, 60, 64, 48
    sJ, sG, sSJ, sW, sPA, sT0, sT1 = 33, 34, 35, 36, 37, 38, 39
    def dump(role):
        if not diag: return
        n = nst[role]
        a("s_memrealtime s[70:71]\ns_waitcnt lgkmcnt(0)")
        a("v_mov_b32 v2, 0")
        for i in range(n):
            a(f"v_writelane_b32 v2, s{72+2*i}, {i}")
        a("v_writelane_b32 v2, s32, 16\nv_writelane_b32 v2, s70, 17")
        a(f"s_lshl_b32 s68, s2, 3\ns_add_u32 s68, s68, s3\ns_lshl_b32 s68, s68, 8\ns_add_u32 s68, s68, {DIAG_OFF}")
        a("v_lshl_add_u32 v3, v0, 2, s68\nglobal_store_dword v3, v2, s[30:31]")

    a(f"""
    s_cmp_ge_u32 s2, 256
    s_cbranch_scc1 L_end
    s_load_dwordx16 s[4:19], s[0:1], 0
    s_load_dwordx8 s[20:27], s[0:1], 64
    s_load_dwordx4 s[28:31], s[0:1], 96
    """)
    if diag:
        a("s_memrealtime s[70:71]")
        a("s_memtime s[72:73]"); nst['H'] = nst['M'] = 1; names['H'].append('start'); names['M'].append('start')
    a(f"""
    v_lshrrev_b32 v1, 6, v0
    v_and_b32 v0, 63, v0
    v_readfirstlane_b32 s3, v1
    s_lshr_b32 s{sT0}, s2, 3
    s_and_b32 s{sJ}, s{sT0}, 7
    s_lshr_b32 s{sT0}, s{sT0}, 3
    s_and_b32 s{sG}, s2, 7
    s_lshl_b32 s{sG}, s{sG}, 2
    s_add_u32 s{sG}, s{sG}, s{sT0}
    s_mul_i32 s{sSJ}, s{sJ}, 43
    s_add_u32 s{sSJ}, s{sSJ}, 5
    s_lshr_b32 s{sSJ}, s{sSJ}, 3
    s_and_b32 s{sPA}, s{sSJ}, 1
    s_and_b32 s{sW}, s3, 3
    v_lshrrev_b32 v4, 3, v0
    v_and_b32 v5, 7, v0
    """)
    a(f"""
    v_lshrrev_b32 v6, 2, v0
    v_and_b32 v6, 4, v6
    v_xor_b32 v6, v5, v6
    v_lshlrev_b32 v6, 4, v6
    v_lshl_add_u32 v6, v4, 10, v6
    s_lshl_b32 s{sT0}, s{sW}, 13
    s_lshl_b32 s{sT1}, s{sJ}, 7
    s_add_u32 s{sT0}, s{sT0}, s{sT1}
    v_add_u32 v126, s{sT0}, v6
    s_cmp_ge_u32 s3, 4
    s_cbranch_scc1 L_mlp
    """)
    vW2 = 126
    def w2_dma(q, tr=None):
        t = f"s_add_u32 m0, s69, {lds_of_slot(q)}\ns_mov_b32 s68, {blk_of_slot(q)*32768}\nbuffer_load_dwordx4 v{vW2}, s[{W2}:{W2+3}], s68 offen lds"
        if tr: tr.issue(t, ('w2', q))
        else: a(t)

    vX, vB2, vHD, vHP, vD, vST, vOA, vOB, vOUT = 100, 108, 112, 120, 122, 96, 124, 125, 123
    a(f"""
    v_lshrrev_b32 v2, 1, v0
    v_lshlrev_b32 v2, 10, v2
    v_and_b32 v3, 1, v0
    v_lshl_add_u32 v2, v3, 4, v2
    s_lshl_b32 s68, s{sG}, 16
    s_add_u32 s68, s68, s{sT1}
    s_lshl_b32 s69, s{sW}, 5
    s_add_u32 s69, s68, s69
    v_add_u32 v3, s69, v2
    v_subrev_u32 v2, 4096, v3
    """)
    a(f"""
    v_lshrrev_b32 v6, 2, v4
    v_and_b32 v7, 3, v4
    v_lshl_add_u32 v6, v6, 4, v7
    v_lshlrev_b32 v6, 10, v6
    v_lshl_add_u32 v6, v5, 4, v6
    s_lshl_b32 s69, s{sW}, 12
    s_add_u32 s68, s68, s69
    v_add_u32 v{vOUT}, s68, v6
    """)
    a(f"""
    v_and_b32 v9, 15, v0
    s_lshl_b32 s68, s{sJ}, 9
    s_lshl_b32 s69, s{sW}, 7
    s_add_u32 s68, s68, s69
    v_lshl_add_u32 v7, v9, 3, s68
    v_lshl_add_u32 v8, v5, 4, s{sT1}
    """)
    a(f"""
    s_lshl_b32 s68, s{sJ}, 5
    s_add_u32 s68, s68, s{sG}
    s_lshl_b32 s68, s68, 2
    s_add_u32 s68, s68, s{sW}
    s_and_b32 s69, s68, -2
    v_mov_b32 v19, s69
    s_lshl_b32 s68, s68, 11
    v_lshl_add_u32 v17, v0, 4, s68
    v_and_b32 v18, 0xfff, v17
    v_cmp_eq_u32 vcc, 0, v18
    v_subrev_u32 v18, 4, v17
    v_cndmask_b32 v18, v18, -16, vcc
    s_lshl_b32 s71, s{sW}, 13
    s_add_u32 s71, s71, {S4}
    """) if not diag else a(f"""
    s_lshl_b32 s68, s{sJ}, 5
    s_add_u32 s68, s68, s{sG}
    s_lshl_b32 s68, s68, 2
    s_add_u32 s68, s68, s{sW}
    s_and_b32 s69, s68, -2
    v_mov_b32 v19, s69
    s_lshl_b32 s68, s68, 11
    v_lshl_add_u32 v17, v0, 4, s68
    v_and_b32 v18, 0xfff, v17
    v_cmp_eq_u32 vcc, 0, v18
    v_subrev_u32 v18, 4, v17
    v_cndmask_b32 v18, v18, -16, vcc
    """)
    a("s_waitcnt lgkmcnt(0)")
    if diag:
        a(f"s_mov_b32 s32, s70\ns_lshl_b32 s71, s{sW}, 13\ns_add_u32 s71, s71, {S4}")
    stamp('H', 'kernarg')
    srd(RK, 6, 0x200000); srd(RV, 8, 0x200000)
    vm = Track(a, 'vmcnt', 63)
    vm.issue(f"s_mov_b32 m0, s71\ns_movk_i32 s68, 28672\nbuffer_load_dwordx4 v2, s[{RK}:{RK+3}], 0 offen lds", 'kv')
    vm.issue(f"s_add_u32 m0, s71, 1024\ns_mov_b32 s69, 61440\nbuffer_load_dwordx4 v3, s[{RK}:{RK+3}], s68 offen lds", 'kv')
    vm.issue(f"s_add_u32 m0, s71, 2048\ns_mov_b64 exec, 0xff\nbuffer_load_dwordx4 v3, s[{RK}:{RK+3}], s69 offen lds\ns_mov_b64 exec, -1", 'kv')
    vm.issue(f"s_add_u32 m0, s71, 2560\ns_mov_b32 s68, 32768\nbuffer_load_dwordx4 v3, s[{RV}:{RV+3}], 0 offen lds", 'kv')
    vm.issue(f"s_add_u32 m0, s71, 3584\ns_nop 0\nbuffer_load_dwordx4 v3, s[{RV}:{RV+3}], s68 offen lds", 'kv')
    vm.issue("global_load_dwordx2 v[10:11], v7, s[10:11]", 'kv')
    srd(WS, 30, WS_SIZE); srd(RX, 4, 0x200000); srd(RO, 12, 0x200000)
    vm.issue(f"buffer_load_dwordx4 {vr(vHD,4)}, v17, s[{RO}:{RO+3}], 0 offen", 'h')
    vm.issue(f"buffer_load_dwordx4 {vr(vHD+4,4)}, v17, s[{RO}:{RO+3}], 0 offen offset:1024", 'h')
    vm.issue(f"buffer_load_dword v{vHP}, v18, s[{RO}:{RO+3}], 0 offen", 'h')
    vm.issue(f"buffer_load_dword v{vHP+1}, v17, s[{RO}:{RO+3}], 0 offen offset:1020", 'h')
    vm.issue(f"global_load_ushort v{vD}, v19, s[14:15]", 'h')
    vm.issue(f"buffer_load_dwordx4 {vr(vX,4)}, v{vOUT}, s[{RX}:{RX+3}], 0 offen", 'h')
    vm.issue(f"buffer_load_dwordx4 {vr(vX+4,4)}, v{vOUT}, s[{RX}:{RX+3}], s68 offen", 'h')
    vm.issue(f"global_load_dwordx4 {vr(vB2,4)}, v8, s[24:25]", 'h')
    a(f"""
    s_lshl_b32 s70, s{sG}, 3
    s_add_u32 s70, s70, s{sJ}
    s_lshl_b32 s70, s70, 9
    s_add_u32 s70, s70, {MB_OFF}
    s_lshl_b32 s68, s{sW}, 7
    s_add_u32 s68, s68, s70
    v_mov_b32 v12, 0
    v_mov_b32 v13, 0
    v_mov_b32 v14, 0
    v_mov_b32 v15, 0
    v_lshlrev_b32 v16, 4, v0
    """)
    vm.issue(f"s_mov_b64 exec, 0xff\nbuffer_store_dwordx4 v[12:15], v16, s[{WS}:{WS+3}], s68 offen sc1\ns_mov_b64 exec, -1", 'mb')
    srd(W1, 18, 512 * 1376 * 2); srd(W2, 22, 512 * 1376 * 2); srd(RO, 26, 0x200000)
    a(f"""
    s_lshl_b32 s68, s{sW}, 6
    v_add_u32 v6, s68, v4
    v_mul_u32_u24 v6, 5504, v6
    v_lshl_add_u32 v6, v5, 4, v6
    s_lshl_b32 s68, s{sSJ}, 6
    s_mul_i32 s69, s{sPA}, 2752
    s_add_u32 s{sT0}, s68, s69
    v_add_u32 v{vOA}, s{sT0}, v6
    s_sub_u32 s68, s68, s69
    s_add_u32 s68, s68, {2752-64}
    v_add_u32 v{vOB}, s68, v6
    """)
    a(f"""
    v_lshrrev_b32 v2, 4, v0
    v_lshlrev_b32 v6, 9, v2
    v_lshl_add_u32 v6, v9, 3, v6
    v_add_u32 v6, s71, v6
    v_lshlrev_b32 v7, 1, v2
    v_xor_b32 v7, v7, v5
    v_lshlrev_b32 v7, 4, v7
    v_lshl_add_u32 v7, v9, 7, v7
    v_add_u32 v7, s71, v7
    v_xor_b32 v3, 16, v7
    v_add_u32 v8, s71, v16
    v_xor_b32 v18, v5, v4
    v_lshlrev_b32 v18, 4, v18
    v_lshl_add_u32 v18, v4, 12, v18
    s_lshl_b32 s68, s{sJ}, 18
    s_lshl_b32 s69, s{sW}, 16
    s_add_u32 s68, s68, s69
    s_lshl_b32 s69, s{sG}, 7
    s_add_u32 s68, s68, s69
    v_add_u32 v18, s68, v18
    """)
    vm.wait('kv')
    stamp('H', 'kv')
    for i in range(5): a(f"ds_read_b64_tr_b16 {vr(20+2*i,2)}, v6 offset:{128*i}")
    for i in range(4): a(f"ds_read_b64_tr_b16 {vr(30+2*i,2)}, v6 offset:{2560+128*i}")
    a(f"""
    v_alignbit_b32 v12, v10, v10, 16
    v_alignbit_b32 v13, v11, v11, 16
    v_and_b32 v14, 0xffff, v10
    v_alignbit_b32 v15, v12, v13, 16
    v_and_b32 v16, 0xffff0000, v11
    s_waitcnt lgkmcnt(4)
    """)
    for m in range(8):
        a(f"v_dot2_f32_bf16 v{40+2*m}, v{20+m}, v16, 0")
        a(f"v_dot2_f32_bf16 v{41+2*m}, v{21+m}, v13, 0")
    for m in range(8):
        a(f"v_dot2_f32_bf16 v{40+2*m}, v{21+m}, v15, v{40+2*m}")
        a(f"v_dot2_f32_bf16 v{41+2*m}, v{22+m}, v12, v{41+2*m}")
    for m in range(8):
        a(f"v_dot2_f32_bf16 v{40+2*m}, v{22+m}, v14, v{40+2*m}")
    a("s_waitcnt lgkmcnt(0)")
    for m in range(8):
        a(f"v_lshlrev_b32 v{56+2*m}, 16, v{30+m}\nv_and_b32 v{57+2*m}, 0xffff0000, v{30+m}")
    for m in range(8):
        a(f"v_pk_mul_f32 {vr(40+2*m,2)}, {vr(40+2*m,2)}, {vr(56+2*m,2)}")
    for q in range(2):
        for d in range(4):
            m = 4 * q + 3 - d
            a(f"v_cvt_pk_bf16_f32 v{72+4*q+d}, v{41+2*m}, v{40+2*m}")
    a(f"""
    ds_write_b128 v7, v[72:75] offset:5120
    ds_write_b128 v3, v[76:79] offset:5120
    s_mov_b32 s68, 32768
    s_waitcnt lgkmcnt(0)
    ds_read_b128 v[80:83], v8 offset:5120
    ds_read_b128 v[84:87], v8 offset:6144
    s_waitcnt lgkmcnt(1)
    """)
    vm.issue(f"buffer_store_dwordx4 v[80:83], v18, s[{WS}:{WS+3}], 0 offen sc1", 'u')
    a("s_waitcnt lgkmcnt(0)")
    vm.issue(f"buffer_store_dwordx4 v[84:87], v18, s[{WS}:{WS+3}], s68 offen sc1", 'u')
    stamp('H', 'Tdone')
    a(f"s_lshl_b32 s71, s{sW}, 13")
    def w1_dma(arr, idx, slot, mask=None, soff_reg=None):
        voff = vOA if arr == 'A' else vOB
        if soff_reg is None: a(f"s_movk_i32 s68, {128*idx}")
        else: a(f"s_mov_b32 s68, s{soff_reg}")
        if mask: a(f"s_mov_b32 exec_lo, {mask:#x}\ns_mov_b32 exec_hi, {mask:#x}")
        for n in range(8):
            t = f"s_add_u32 m0, s71, {slot + 1024*n}\n"
            t += "s_add_u32 s68, s68, 44032\n" if n else "s_nop 0\n"
            t += f"buffer_load_dwordx4 v{voff}, s[{W1}:{W1+3}], s68 offen lds"
            vm.issue(t, (arr, idx))
        if mask: a("s_mov_b64 exec, -1")
    w1_dma('B', 0, S2, mask=0xf0f0f0f0)
    w1_dma('A', 0, S3)
    w1_dma('B', 1, S4)
    a(f"""
    v_lshrrev_b32 v6, 2, v4
    v_lshlrev_b32 v6, 9, v6
    v_and_b32 v7, 3, v4
    v_lshl_add_u32 v6, v7, 4, v6
    s_lshl_b32 s68, s{sW}, 7
    s_add_u32 s68, s68, {S2 + 8}
    v_add_u32 v6, s68, v6
    s_lshr_b32 s68, s2, 3
    s_and_b32 s68, s68, 3
    s_lshl_b32 s68, s68, 6
    v_mov_b32 v7, s68
    v_mov_b32 v8, 1
    """)
    vm.wait('u')
    stamp('H', 'preBx1')
    a("s_barrier")
    a(f"""
    s_cmp_lg_u32 s{sW}, 0
    s_cbranch_scc1 L_h_noatom
    s_mov_b64 exec, 1
    global_atomic_add v7, v8, s[28:29] sc1
    s_mov_b64 exec, -1
    L_h_noatom:
    ds_read_b64 {vr(vST,2)}, v6
    ds_read_b64 {vr(vST+2,2)}, v6 offset:1024
    s_mul_i32 s68, s{sJ}, 43
    s_add_u32 s68, s68, 48
    s_lshr_b32 s68, s68, 3
    s_sub_u32 s68, s68, s{sSJ}
    s_cmp_eq_u32 s68, 6
    s_mov_b32 s{sT0}, {OOB:#x}
    s_cselect_b32 s{sT0}, 384, s{sT0}
    s_waitcnt lgkmcnt(0)
    s_barrier
    """)
    w1_dma('A', 1, S0)
    vm.wait(('B', 1))
    stamp('H', 'preP0')
    a("s_barrier")
    w1_dma('B', 2, S1)
    a("s_barrier")
    w1_dma('A', 2, S2)
    vm.wait(('B', 2))
    stamp('H', 'preP1')
    a("s_barrier")
    w1_dma('B', 3, S3, mask=0x0f0f0f0f, soff_reg=sT0)
    for i in range(2):
        a(f"v_alignbit_b32 v{20+4*i}, v{vHD+4*i}, v{vHP+i}, 16")
        for d in range(1, 4):
            a(f"v_alignbit_b32 v{20+4*i+d}, v{vHD+4*i+d}, v{vHD+4*i+d-1}, 16")
    a(f"""
    s_lshr_b32 s68, s{sW}, 1
    s_mul_i32 s{sT0}, s68, 8320
    s_add_u32 s{sT0}, s{sT0}, {S4}
    s_mul_i32 s{sT1}, s68, 4608
    s_add_u32 s{sT1}, s{sT1}, {S4 + 16640}
    s_and_b32 s{sPA}, s{sW}, 1
    s_lshl_b32 s68, s{sPA}, 11
    s_add_u32 s68, s68, s{sT0}
    v_lshlrev_b32 v16, 4, v0
    v_add_u32 v6, s68, v16
    v_add_u32 v7, s{sT0}, v16
    v_add_u32 v8, s{sT1}, v16
    v_mov_b32 v12, 0
    v_mov_b32 v13, 0
    v_mov_b32 v14, 0
    v_mov_b32 v15, 0
    v_and_b32 v17, 3, v0
    v_lshlrev_b32 v17, 6, v17
    s_lshl_b32 s69, s{sW}, 10
    s_barrier
    """)
    for q in range(8): w2_dma(q, vm)
    a(f"""
    ds_write_b128 v6, {vr(vHD,4)} offset:32
    ds_write_b128 v6, {vr(vHD+4,4)} offset:1056
    ds_write_b128 v6, v[20:23] offset:{4160+32}
    ds_write_b128 v6, v[24:27] offset:{4160+1056}
    s_mov_b32 exec_hi, 0
    ds_write_b128 v8, v[12:15]
    s_mov_b64 exec, 3
    ds_write_b128 v7, v[12:15]
    ds_write_b128 v7, v[12:15] offset:4160
    s_mov_b64 exec, -1
    """)
    vm.wait(('B', 3))
    stamp('H', 'preP2')
    a("s_barrier")
    a(f"""
    s_cmp_lg_u32 s{sW}, 0
    s_cbranch_scc1 L_h_nou
    s_mov_b32 s68, 0
    L_h_pollT:
    global_load_dword v18, v17, s[28:29] sc1
    s_add_u32 s68, s68, 1
    s_waitcnt vmcnt(0)
    v_cmp_ne_u32 vcc, 64, v18
    s_cbranch_vccz L_h_gotT
    s_cmp_lt_u32 s68, 0x8000
    s_cbranch_scc1 L_h_pollT
    L_h_gotT:
    s_lshl_b32 s68, s{sJ}, 5
    s_add_u32 s68, s68, s{sG}
    s_lshl_b32 s68, s68, 13
    s_mov_b32 m0, {S4 + 16640 + 512}
    """)
    for i in range(4): a(f"buffer_load_dwordx4 v16, s[{WS}:{WS+3}], s68 offen offset:{1024*i} sc1 lds")
    a(f"s_mov_b32 m0, {S4 + 16640 + 512 + 4608}\ns_add_u32 s68, s68, 4096")
    for i in range(4): a(f"buffer_load_dwordx4 v16, s[{WS}:{WS+3}], s68 offen offset:{1024*i} sc1 lds")
    a("L_h_nou:")
    a(f"""
    v_lshrrev_b32 v7, 4, v0
    v_lshrrev_b32 v8, 1, v9
    v_lshl_add_u32 v8, v7, 2, v8
    v_lshlrev_b32 v8, 2, v8
    v_and_b32 v10, 1, v0
    v_mul_u32_u24 v10, 4160, v10
    v_sub_u32 v8, v8, v10
    s_lshl_b32 s68, s{sPA}, 8
    s_add_u32 s68, s68, s{sT0}
    s_add_u32 s68, s68, {4160 + 4}
    v_add_u32 v2, s68, v8
    v_add_u32 v3, 1024, v2
    v_add_u32 v10, 2048, v2
    v_add_u32 v11, 3072, v2
    v_lshlrev_b32 v8, 1, v9
    v_sub_u32 v8, v8, v7
    v_lshlrev_b32 v8, 4, v8
    s_lshl_b32 s68, s{sPA}, 8
    s_sub_u32 s68, s{sT1}, s68
    s_add_u32 s68, s68, {16*21}
    v_add_u32 v6, s68, v8
    v_lshl_add_u32 v8, v7, 3, v9
    v_sub_u32 v8, 15, v8
    v_and_b32 v18, 1, v8
    v_lshlrev_b32 v18, 4, v18
    v_lshlrev_b32 v18, v18, v{vD}
    v_lshrrev_b32 v8, 1, v8
    s_lshl_b32 s68, s{sPA}, 4
    v_add_u32 v8, s68, v8
    """)
    for d in range(4):
        a(f"v_cmp_eq_u32 vcc, {d}, v8\nv_cndmask_b32 v{12+d}, 0, v18, vcc")
    vAaddr = [2, 3, 10, 11]
    a("s_waitcnt vmcnt(0) lgkmcnt(0)"); vm.q = []
    stamp('H', 'preF2')
    a("s_barrier")
    ACC = 136
    SETS = [(168, 200), (32, 64)]
    lg = Track(a, 'lgkmcnt', 15)
    def rdA(it, q, h):
        base = SETS[it & 1][0] + 4 * q + 2 * h
        o = 128 * (q & 1) + 16 * it + 2 * h
        lg.issue(f"ds_read2_b32 {vr(base,2)}, v{vAaddr[q>>1]} offset0:{o} offset1:{o+1}", ('A', it, q))
    def rdB(it, p):
        lg.issue(f"ds_read_b128 {vr(SETS[it&1][1]+4*p,4)}, v6 offset:{512*p + 64*(3-it)}", ('B', it, p))
    def reads(it):
        l = [(rdB, it, 0), (rdA, it, 0, 0), (rdA, it, 0, 1)]
        l += [(rdB, it, p) for p in range(1, 8)]
        for q in range(1, 8): l += [(rdA, it, q, 0), (rdA, it, q, 1)]
        return l
    pend = [(rdB, 0, p) for p in range(8)]
    for q in range(8): pend += [(rdA, 0, q, 0), (rdA, 0, q, 1)]
    def pop(n=1):
        for _ in range(n):
            if pend:
                f = pend.pop(0); f[0](*f[1:])
    pop(12)
    for r in range(8):
        lg.wait(('B', 0, r))
        a(f"v_mfma_f32_16x16x32_bf16 {vr(ACC+4*r,4)}, v[12:15], {vr(SETS[0][1]+4*r,4)}, 0")
        pop(1)
    for it in range(4):
        if it < 3: pend += reads(it + 1)
        for q in range(8):
            for r in range(q, 8):
                lg.wait(('A', it, q), ('B', it, r - q))
                a(f"v_mfma_f32_16x16x32_bf16 {vr(ACC+4*r,4)}, {vr(SETS[it&1][0]+4*q,4)}, {vr(SETS[it&1][1]+4*(r-q),4)}, {vr(ACC+4*r,4)}")
                pop(1)
        assert not pend
    a(f"""
    s_lshl_b32 s68, s{sW}, 13
    v_add_u32 v2, s68, v16
    v_add_u32 v3, s69, v16
    """)
    stamp('H', 'preR1')
    a("s_barrier")
    for r in range(8):
        a(f"ds_write_b128 v2, {vr(ACC+4*r,4)} offset:{(r&1)*4096 + (r>>1)*1024}")
    for q in range(32, 40): w2_dma(q, vm)
    a(f"""
    v_lshrrev_b32 v6, 2, v9
    v_lshlrev_b32 v6, 8, v6
    v_lshl_add_u32 v6, v7, 6, v6
    v_and_b32 v10, 3, v0
    v_lshl_add_u32 v6, v10, 4, v6
    s_lshl_b32 s68, s{sJ}, 5
    s_add_u32 s68, s68, s{sG}
    s_mul_i32 s68, s68, {Z_PITCH}
    s_lshl_b32 s{sT0}, s{sW}, 11
    s_add_u32 s68, s68, s{sT0}
    s_add_u32 s68, s68, {Z_OFF}
    v_add_u32 v6, s68, v6
    s_lshl_b32 s68, s{sW}, 6
    s_add_u32 s68, s68, s{sJ}
    s_lshl_b32 s68, s68, 9
    s_lshl_b32 s{sT0}, s{sG}, 2
    s_add_u32 s68, s68, s{sT0}
    s_add_u32 s68, s68, {MB_OFF + 256}
    v_lshl_add_u32 v7, v0, 12, s68
    v_and_b32 v8, 31, v0
    s_add_u32 s68, s70, 256
    v_lshl_add_u32 v8, v8, 2, s68
    s_waitcnt lgkmcnt(0)
    s_barrier
    """)
    for s in range(8): a(f"ds_read_b128 {vr(32+4*s,4)}, v3 offset:{4096*s}")
    a("s_waitcnt lgkmcnt(0)")
    for e in range(2):
        for h in range(2):
            a(f"v_pk_add_f32 {vr(32+4*e+2*h,2)}, {vr(32+4*e+2*h,2)}, {vr(40+4*e+2*h,2)}")
            a(f"v_pk_add_f32 {vr(48+4*e+2*h,2)}, {vr(48+4*e+2*h,2)}, {vr(56+4*e+2*h,2)}")
        for i in range(4):
            a(f"v_cvt_pk_bf16_f32 v{64+4*e+i}, v{32+4*e+i}, v{48+4*e+i}")
        vm.issue(f"buffer_store_dwordx4 {vr(64+4*e,4)}, v6, s[{WS}:{WS+3}], 0 offen offset:{1024*e} sc1", 'z')
    for q in range(40, 43): w2_dma(q, vm)
    stamp('H', 'zst')
    for rr in range(2):
        for d in range(4):
            a(f"v_lshlrev_b32 v{48+8*rr+2*d}, 16, v{vX+4*rr+d}\nv_and_b32 v{49+8*rr+2*d}, 0xffff0000, v{vX+4*rr+d}")
    for d in range(4):
        a(f"v_lshlrev_b32 v{72+2*d}, 16, v{vB2+d}\nv_and_b32 v{73+2*d}, 0xffff0000, v{vB2+d}")
    for rr in range(2):
        for d in range(4):
            r = 8 * rr + 2 * d
            a(f"v_pk_add_f32 {vr(32+r,2)}, {vr(48+r,2)}, {vr(vST+2*rr,2)} op_sel_hi:[1,0] neg_lo:[0,1] neg_hi:[0,1]")
        for d in range(4):
            r = 8 * rr + 2 * d
            a(f"v_pk_mul_f32 {vr(32+r,2)}, {vr(32+r,2)}, {vr(vST+2*rr,2)} op_sel:[0,1] op_sel_hi:[1,1]")
            a(f"v_pk_add_f32 {vr(48+r,2)}, {vr(48+r,2)}, {vr(72+2*d,2)}")
    a(f"""
    v_lshrrev_b32 v11, 2, v0
    v_mul_u32_u24 v12, {Z_PITCH}, v11
    v_lshrrev_b32 v11, 4, v0
    v_xor_b32 v10, v10, v11
    v_lshl_add_u32 v10, v10, 4, v12
    s_mul_i32 s68, s{sJ}, {32*Z_PITCH}
    s_lshl_b32 s{sT0}, s{sG}, 8
    s_add_u32 s68, s68, s{sT0}
    s_lshl_b32 s{sT0}, s{sW}, 6
    s_add_u32 s68, s68, s{sT0}
    s_add_u32 s68, s68, {Z_OFF}
    v_add_u32 v10, s68, v10
    v_and_b32 v12, 3, v5
    v_lshrrev_b32 v13, 2, v4
    v_xor_b32 v11, v13, v12
    v_lshlrev_b32 v11, 4, v11
    v_lshl_add_u32 v11, v12, 8, v11
    v_and_b32 v14, 3, v4
    v_lshl_add_u32 v11, v14, 2, v11
    v_lshrrev_b32 v12, 2, v5
    v_lshl_add_u32 v11, v12, 12, v11
    s_add_u32 s68, s69, {3*4096}
    v_add_u32 v11, s68, v11
    v_xor_b32 v12, 32, v11
    v_lshl_add_u32 v13, v13, 4, v14
    v_mul_u32_u24 v13, 272, v13
    v_lshl_add_u32 v13, v5, 5, v13
    s_mul_i32 s68, s{sW}, {4*272}
    s_add_u32 s68, s68, {S1}
    v_add_u32 v13, s68, v13
    v_mov_b32 v14, 1
    """)
    vm.drain()
    a(f"s_mov_b64 exec, 0xff\nbuffer_store_dword v14, v7, s[{WS}:{WS+3}], 0 offen sc1\ns_mov_b64 exec, -1")
    stamp('H', 'preW3')
    a(f"""
    s_barrier
    s_mov_b32 s68, 0
    L_h_pollZ:
    buffer_load_dword v18, v8, s[{WS}:{WS+3}], 0 offen sc1
    s_add_u32 s68, s68, 1
    s_waitcnt vmcnt(0)
    v_cmp_ne_u32 vcc, 1, v18
    s_cbranch_vccz L_h_gotZ
    s_cmp_lt_u32 s68, 0x8000
    s_cbranch_scc1 L_h_pollZ
    L_h_gotZ:
    s_add_u32 m0, s69, {3*4096}
    s_mov_b32 s68, {16*Z_PITCH}
    buffer_load_dwordx4 v10, s[{WS}:{WS+3}], 0 offen sc1 lds
    s_add_u32 m0, s69, {4*4096}
    s_nop 0
    buffer_load_dwordx4 v10, s[{WS}:{WS+3}], s68 offen sc1 lds
    """)
    stamp('H', 'gotZ')
    a("s_waitcnt vmcnt(0)")
    for rr in range(2):
        for d in range(4): a(f"ds_read_b32 v{64+4*rr+d}, v{11+rr} offset:{64*d}")
    a("s_mov_b32 s68, 32768\ns_waitcnt lgkmcnt(0)")
    for i in range(8):
        a(f"v_lshlrev_b32 v{72+2*i}, 16, v{64+i}\nv_and_b32 v{73+2*i}, 0xffff0000, v{64+i}")
    for i in range(8):
        a(f"v_pk_fma_f32 {vr(48+2*i,2)}, {vr(32+2*i,2)}, {vr(72+2*i,2)}, {vr(48+2*i,2)}")
    stamp('H', 'preE')
    a("s_barrier")
    for rr in range(2):
        for kh in range(2):
            for h in range(2):
                a(f"ds_read_b128 {vr(64+16*rr+8*kh+4*h,4)}, v13 offset:{kh*64*272 + rr*32*272 + 16*h}")
    for rr in range(2):
        a(f"s_waitcnt lgkmcnt({4*(1-rr)})")
        for d in range(4):
            a(f"v_pk_add_f32 {vr(48+8*rr+2*d,2)}, {vr(48+8*rr+2*d,2)}, {vr(64+16*rr+2*d,2)}")
        for d in range(4):
            a(f"v_pk_add_f32 {vr(48+8*rr+2*d,2)}, {vr(48+8*rr+2*d,2)}, {vr(72+16*rr+2*d,2)}")
        for d in range(4):
            a(f"v_cvt_pk_bf16_f32 v{32+4*rr+d}, v{48+8*rr+2*d}, v{49+8*rr+2*d}")
        a(f"buffer_store_dwordx4 {vr(32+4*rr,4)}, v{vOUT}, s[{RO}:{RO+3}], {'s68' if rr else '0'} offen")
    if diag:
        a("s_waitcnt vmcnt(0)")
        stamp('H', 'end')
        dump('H')
    a("s_endpgm")

    a("L_mlp:")
    sTH, sCG = 66, 67
    XR, XF = 16, 128
    vB1 = 80
    a(f"""
    s_lshr_b32 s{sTH}, s{sW}, 1
    s_and_b32 s{sCG}, s{sW}, 1
    v_lshlrev_b32 v2, 10, v4
    v_lshl_add_u32 v2, v5, 4, v2
    s_lshl_b32 s68, s{sG}, 16
    s_lshl_b32 s69, s{sW}, 14
    s_add_u32 s68, s68, s69
    v_add_u32 v2, s68, v2
    v_and_b32 v9, 31, v0
    v_lshrrev_b32 v10, 5, v0
    s_add_u32 s68, s{sSJ}, s{sCG}
    s_lshl_b32 s69, s68, 6
    v_lshl_add_u32 v6, v9, 1, s69
    s_add_u32 s68, s68, 4
    s_min_u32 s68, s68, 42
    s_lshl_b32 s69, s68, 6
    v_lshl_add_u32 v7, v9, 1, s69
    s_movk_i32 s68, 8192
    s_waitcnt lgkmcnt(0)
    """)
    if diag: a("s_mov_b32 s32, s70")
    srd(RX, 4, 0x200000)
    vm = Track(a, 'vmcnt', 63)
    for bt in range(2):
        for i in range(8):
            vm.issue(f"buffer_load_dwordx4 {vr(XR+32*bt+4*i,4)}, v2, s[{RX}:{RX+3}], {'s68' if bt else '0'} offen offset:{128*i}", ('x', bt, i))
    vm.issue(f"global_load_ushort v{vB1}, v6, s[20:21]", 'b1')
    vm.issue(f"global_load_ushort v{vB1+1}, v6, s[20:21] offset:128", 'b1')
    vm.issue(f"global_load_ushort v{vB1+2}, v7, s[20:21]", 'b1')
    srd(WS, 30, WS_SIZE); srd(W2, 22, 512 * 1376 * 2)
    a(f"""
    v_xor_b32 v3, v4, v5
    v_lshlrev_b32 v3, 4, v3
    v_lshl_add_u32 v3, v5, 10, v3
    s_lshl_b32 s68, s{sW}, 8
    v_add_u32 v3, s68, v3
    v_lshrrev_b32 v8, 2, v4
    v_lshlrev_b32 v8, 7, v8
    v_and_b32 v6, 3, v4
    v_lshl_add_u32 v8, v6, 4, v8
    s_lshl_b32 s68, s{sW}, 9
    s_add_u32 s68, s68, {S2}
    v_add_u32 v8, s68, v8
    s_mov_b32 s48, 0x3f803f80
    s_mov_b32 s49, 0x00003f80
    s_mov_b32 s50, 0x3f800000
    s_mov_b32 s51, {f2u(1e-5):#x}
    """)
    def red8(r, t):
        a(f"v_add_f32_dpp v{t}, v{r}, v{r} quad_perm:[1,0,3,2] row_mask:0xf bank_mask:0xf")
        a(f"v_add_f32_dpp v{r}, v{t}, v{t} quad_perm:[2,3,0,1] row_mask:0xf bank_mask:0xf")
        a(f"v_add_f32_dpp v{t}, v{r}, v{r} row_half_mirror row_mask:0xf bank_mask:0xf")
    def rbf(d, s):
        a(f"v_cvt_pk_bf16_f32 v{d}, v{s}, v{s}\nv_and_b32 v{d}, 0xffff0000, v{d}")
    for bt in range(2):
        X = XR + 32 * bt
        for i in range(8):
            vm.wait(('x', bt, i))
            for d in range(4):
                a(f"v_dot2_f32_bf16 v{84+d}, v{X+4*i+d}, s48, {'v%d' % (84+d) if i else '0'}")
        if bt == 1: stamp('M', 'xland')
        a("v_pk_add_f32 v[84:85], v[84:85], v[86:87]\nv_add_f32 v84, v84, v85")
        red8(84, 85)
        a(f"v_mul_f32 v88, {f2u(-1/512):#x}, v85")
        for i in range(8):
            T = 96 + 8 * (i & 1)
            for d in range(4):
                a(f"v_dot2_f32_bf16 v{T+2*d}, v{X+4*i+d}, s49, v88\nv_dot2_f32_bf16 v{T+2*d+1}, v{X+4*i+d}, s50, v88")
            if i:
                for d in range(4):
                    a(f"v_dot2_f32_bf16 v{84+d}, v{X+4*(i-1)+d}, v{X+4*(i-1)+d}, {'v%d' % (84+d) if i > 1 else '0'}")
            for d in range(4):
                a(f"v_cvt_pk_bf16_f32 v{X+4*i+d}, v{T+2*d}, v{T+2*d+1}")
            a(f"ds_write_b128 v3, {vr(X+4*i,4)} offset:{8192*i + 128*bt}")
        for d in range(4):
            a(f"v_dot2_f32_bf16 v{84+d}, v{X+28+d}, v{X+28+d}, v{84+d}")
        a("v_sub_f32 v94, 0, v88")
        rbf(94, 94)
        a("v_pk_add_f32 v[84:85], v[84:85], v[86:87]\nv_add_f32 v84, v84, v85")
        red8(84, 85)
        a(f"v_mul_f32 v85, {f2u(1/512):#x}, v85")
        rbf(86, 85); a("v_add_f32 v86, s51, v86"); rbf(86, 86); a("v_sqrt_f32 v86, v86"); rbf(86, 86)
        a("v_rcp_f32 v95, v86\nv_mul_f32 v87, v95, v95\nv_mul_f32 v87, v87, v85")
        rbf(87, 87); a("v_add_f32 v87, s51, v87"); rbf(87, 87); a("v_sqrt_f32 v87, v87"); rbf(87, 87)
        a("v_mul_f32 v86, v86, v87\nv_rcp_f32 v92, v86")
        rbf(87, 86); a("v_sub_f32 v86, v86, v87\nv_cvt_pk_bf16_f32 v93, v87, v86")
        a(f"s_mov_b32 exec_lo, 0x01010101\ns_mov_b32 exec_hi, 0x01010101\nds_write_b128 v8, v[92:95] offset:{256*bt}\ns_mov_b64 exec, -1")
    a(f"""
    s_lshl_b32 s68, s{sTH}, 5
    v_add_u32 v6, s68, v9
    """)
    for m in range(4):
        a(f"v_add_u32 v7, {2*m}, v10\nv_xor_b32 v7, v6, v7\nv_lshlrev_b32 v7, 4, v7\nv_lshl_add_u32 v{11+m}, v10, 10, v7")
    a(f"""
    v_lshrrev_b32 v7, 2, v6
    v_lshlrev_b32 v7, 7, v7
    v_and_b32 v15, 3, v6
    v_lshl_add_u32 v15, v15, 4, v7
    v_add_u32 v15, {S2}, v15
    s_waitcnt lgkmcnt(0)
    """)
    stamp('M', 'preBx1')
    a("s_barrier")
    a("ds_read_b64 v[64:65], v15")
    for ks in range(32):
        a(f"ds_read_b128 {vr(XF+4*ks,4)}, v{11+(ks&3)} offset:{2048*ks}")
    a(f"""
    v_lshrrev_b32 v11, 2, v0
    v_and_b32 v11, 3, v11
    v_and_b32 v12, 1, v11
    v_cmp_eq_u32 s[52:53], s{sPA}, v12
    v_lshrrev_b32 v12, 1, v11
    v_lshl_add_u32 v13, v10, 2, v12
    v_lshlrev_b32 v3, 7, v13
    v_and_b32 v13, 3, v0
    v_lshl_add_u32 v3, v13, 3, v3
    v_and_b32 v14, 16, v0
    v_lshl_add_u32 v3, v14, 1, v3
    v_lshl_add_u32 v7, v10, 2, v11
    v_lshlrev_b32 v7, 7, v7
    v_lshl_add_u32 v7, v13, 3, v7
    v_lshl_add_u32 v7, v14, 1, v7
    v_lshl_add_u32 v7, v12, 6, v7
    s_lshl_b32 s68, s{sCG}, 12
    v_add_u32 v120, s68, v7
    v_xor_b32 v121, 64, v120
    s_lshl_b32 s68, s{sG}, 1
    s_add_u32 s68, s68, s{sTH}
    s_mul_i32 s68, s68, {44*2048}
    s_add_u32 s68, s68, {H_OFF}
    v_lshl_add_u32 v2, v0, 4, s68
    s_lshl_b32 s68, s{sG}, 12
    s_lshl_b32 s69, s{sTH}, 7
    s_add_u32 s68, s68, s69
    s_add_u32 s68, s68, {MB_OFF}
    s_lshl_b32 s69, s{sJ}, 1
    s_add_u32 s69, s69, s{sCG}
    s_lshl_b32 s70, s69, 2
    s_add_u32 s70, s70, s68
    v_lshl_add_u32 v4, v0, 9, s70
    s_lshl_b32 s70, s{sJ}, 9
    s_add_u32 s70, s70, s68
    v_and_b32 v5, 15, v0
    v_lshl_add_u32 v5, v5, 2, s70
    s_lshl_b32 s54, s69, 11
    s_add_u32 s55, s54, {16*2048}
    s_lshl_b32 s70, s{sJ}, 2
    s_sub_u32 s70, s{sSJ}, s70
    s_add_u32 s70, s70, s{sCG}
    s_add_u32 s70, s70, 32
    s_lshl_b32 s56, s70, 11
    s_mul_i32 s70, s{sJ}, 43
    s_add_u32 s70, s70, 48
    s_lshr_b32 s70, s70, 3
    s_sub_u32 s70, s70, s{sSJ}
    s_sub_u32 s70, s70, s{sCG}
    s_cmp_eq_u32 s70, 4
    s_cselect_b32 s56, {OOB:#x}, s56
    s_lshl_b32 s70, s{sCG}, 6
    s_add_u32 s57, s70, {S3}
    s_add_u32 s58, s70, {S0}
    s_add_u32 s59, s70, {S2}
    s_cmp_eq_u32 s{sCG}, 0
    s_cselect_b32 s60, {S2+64}, {S4}
    s_cselect_b32 s61, {S4+64}, {S1}
    s_cselect_b32 s62, {S1+64}, {S3}
    s_mov_b32 s63, 0
    s_mov_b32 s48, {f2u(-2*math.sqrt(2/math.pi)*math.log2(math.e)*0.044715):#x}
    v_mov_b32 v66, {f2u(-2*math.sqrt(2/math.pi)*math.log2(math.e)):#x}
    v_mov_b32 v57, 0
    v_mov_b32 v58, 0
    v_mov_b32 v59, 0
    v_mov_b32 v61, 0
    v_mov_b32 v62, 0
    v_mov_b32 v63, 0
    v_cmp_gt_u32 vcc, 32, v0
    s_lshl_b32 s69, s{sW}, 10
    s_waitcnt vmcnt(0) lgkmcnt(0)
    v_cndmask_b32 v60, 0, v65, vcc
    """.replace(f"s_cselect_b32 s60, {S2+64}, {S4}", f"s_mov_b32 s60, {S4}\ns_cselect_b32 s60, {S2+64}, s60")
       .replace(f"s_cselect_b32 s61, {S4+64}, {S1}", f"s_mov_b32 s61, {S1}\ns_cselect_b32 s61, {S4+64}, s61")
       .replace(f"s_cselect_b32 s62, {S1+64}, {S3}", f"s_mov_b32 s62, {S3}\ns_cselect_b32 s62, {S1+64}, s62"))
    vm.q = []
    stamp('M', 'preBx2')
    a("s_barrier")
    A1, WR, NR = 16, 32, 6
    a(f"""
    L_pass:
    v_mov_b32 v7, s60
    v_mov_b32 v8, s57
    v_cndmask_b32 v7, v7, v8, s[52:53]
    v_add_u32 v7, v7, v3
    v_lshl_or_b32 v56, v{vB1}, 16, v{vB1}
    v_mov_b32 v{vB1}, v{vB1+1}
    v_mov_b32 v{vB1+1}, v{vB1+2}
    s_barrier
    """)
    lg = Track(a, 'lgkmcnt', 15)
    def rdW(ks):
        for i in range(2):
            lg.issue(f"ds_read_b64_tr_b16 {vr(WR+4*(ks%NR)+2*i,2)}, v7 offset:{1024*ks+256*i}", ks)
    for ks in range(NR): rdW(ks)
    a(f"v_mfma_f32_32x32x16_bf16 {vr(A1,16)}, v[56:59], v[60:63], 0")
    for ks in range(32):
        lg.wait(ks)
        if ks == 31: a("s_barrier")
        a(f"v_mfma_f32_32x32x16_bf16 {vr(A1,16)}, {vr(WR+4*(ks%NR),4)}, {vr(XF+4*ks,4)}, {vr(A1,16)}")
        if ks + NR < 32: rdW(ks + NR)
    a("s_cmp_lg_u32 s63, 2\ns_cbranch_scc1 L_nodma")
    for q in range(8, 16): w2_dma(q)
    a("L_nodma:\ns_nop 7\ns_nop 3")
    G = 84
    for h in range(2):
        R = range(4 * h, 4 * h + 4)
        for i in R: a(f"v_pk_mul_f32 {vr(A1+2*i,2)}, {vr(A1+2*i,2)}, v[64:65] op_sel_hi:[1,0]")
        for i in R: a(f"v_pk_mul_f32 {vr(G+2*i,2)}, {vr(A1+2*i,2)}, {vr(A1+2*i,2)}")
        for i in R: a(f"v_pk_fma_f32 {vr(G+2*i,2)}, {vr(G+2*i,2)}, s[48:49], v[66:67] op_sel_hi:[1,0,0]")
        for i in R: a(f"v_pk_mul_f32 {vr(G+2*i,2)}, {vr(G+2*i,2)}, {vr(A1+2*i,2)}")
        for i in R: a(f"v_exp_f32 v{G+2*i}, v{G+2*i}\nv_exp_f32 v{G+2*i+1}, v{G+2*i+1}")
        for i in R: a(f"v_pk_add_f32 {vr(G+2*i,2)}, {vr(G+2*i,2)}, 1.0 op_sel_hi:[1,0]")
        for i in R: a(f"v_rcp_f32 v{G+2*i}, v{G+2*i}\nv_rcp_f32 v{G+2*i+1}, v{G+2*i+1}")
        for i in R: a(f"v_pk_mul_f32 {vr(G+2*i,2)}, {vr(G+2*i,2)}, {vr(A1+2*i,2)}")
        for i in R: a(f"v_cvt_pk_bf16_f32 v{112+i}, v{G+2*i}, v{G+2*i+1}")
        if h == 0:
            a(f"""
            s_cmp_lg_u32 s63, 2
            s_cbranch_scc1 L_noflag
            v_mov_b32 v8, 1
            s_waitcnt vmcnt(8)
            s_mov_b64 exec, 0xff
            buffer_store_dword v8, v4, s[{WS}:{WS+3}], 0 offen sc1
            s_mov_b64 exec, -1
            L_noflag:
            """)
        a(f"buffer_store_dwordx4 {vr(112+4*h,4)}, v2, s[{WS}:{WS+3}], s54 offen offset:{1024*h} sc1")
    a(f"""
    s_mov_b32 s54, s55
    s_mov_b32 s55, s56
    s_mov_b32 s57, s58
    s_mov_b32 s58, s59
    s_mov_b32 s60, s61
    s_mov_b32 s61, s62
    s_add_u32 s63, s63, 1
    s_cmp_lt_u32 s63, 3
    s_cbranch_scc1 L_pass
    """)
    stamp('M', 'G1done')
    vm = Track(a, 'vmcnt', 63); vm.q = ['h2']
    lg = Track(a, 'lgkmcnt', 15)
    PRE, HR, WSR, A2 = 128, 192, 48, 16
    vWB = {0: 120, 1: 122, 2: 124}
    a("v_add_u32 v122, 0x10000, v120\nv_add_u32 v123, 0x10000, v121\nv_add_u32 v124, 0x20000, v120\nv_add_u32 v125, 0x20000, v121")
    a(f"s_lshl_b32 s68, s{sCG}, 11\nv_add_u32 v2, s68, v2")
    def wreg(n): return PRE + 8 * n if n < 8 else WSR + 8 * (n % 4)
    def rdW2(n):
        off = lds_of_slot(2 * (n >> 1)) + 2048 * (n & 1)
        for ct in range(2):
            for i in range(2):
                o = off + 1024 * i
                lg.issue(f"ds_read_b64_tr_b16 {vr(wreg(n)+4*ct+2*i,2)}, v{vWB[o>>16]+ct} offset:{o & 0xffff}", n)
    for q in range(16, 24):
        w2_dma(q, vm); rdW2(q - 16)
    vm.wait('h2')
    vm.issue(f"v_mov_b32 v8, 2\ns_mov_b64 exec, 0xff\nbuffer_store_dword v8, v4, s[{WS}:{WS+3}], 0 offen sc1\ns_mov_b64 exec, -1", 'fl')
    vm.issue(f"buffer_load_dword v9, v5, s[{WS}:{WS+3}], 0 offen sc1", 'pollA')
    for q in range(24, 32): w2_dma(q, vm)
    def check(tag, val, lab):
        vm.wait(tag)
        a(f"""
        v_cmp_gt_u32 vcc, {val}, v9
        s_cbranch_vccz L_ok{lab}
        s_mov_b32 s68, 0
        L_spin{lab}:
        buffer_load_dword v9, v5, s[{WS}:{WS+3}], 0 offen sc1
        s_add_u32 s68, s68, 1
        s_waitcnt vmcnt(0)
        v_cmp_gt_u32 vcc, {val}, v9
        s_cbranch_vccz L_ok{lab}
        s_cmp_lt_u32 s68, 0x8000
        s_cbranch_scc1 L_spin{lab}
        L_ok{lab}:
        """)
    stamp('M', 'preChkA')
    check('pollA', 1, 'A')
    stamp('M', 'gotA')
    DH = opt.get('DH', 12)
    a(f"s_cmp_eq_u32 s{sCG}, 0\ns_mov_b32 s70, {OOB:#x}\ns_cselect_b32 s70, {21*4096}, s70")
    def ldH(n):
        qq, uu = n >> 1, n & 1
        t = ""
        if qq == 21: so = 's70'
        else:
            so = 's68'
            if uu == 0: t = f"s_mov_b32 s68, {4096*qq}\n"
        vm.issue(t + f"buffer_load_dwordx4 {vr(HR+4*(n%16),4)}, v2, s[{WS}:{WS+3}], {so} offen offset:{1024*uu} sc1", ('H', n))
        if n == 31 - DH:
            vm.issue(f"buffer_load_dword v9, v5, s[{WS}:{WS+3}], 0 offen sc1", 'pollB')
    for n in range(DH): ldH(n)
    lg.drain()
    DW = 3
    for n in range(44):
        if n == 42:
            a(f"s_cmp_lg_u32 s{sCG}, 0\ns_cbranch_scc1 L_g2done")
        vm.wait(('H', n)); lg.wait(n)
        for ct in range(2):
            c = vr(A2 + 16 * ct, 16) if n else '0'
            a(f"v_mfma_f32_32x32x16_bf16 {vr(A2+16*ct,16)}, {vr(wreg(n)+4*ct,4)}, {vr(HR+4*(n%16),4)}, {c}")
        m = n + DW
        if m == 8:
            stamp('M', 'preR1'); a("s_barrier"); stamp('M', 'R1')
        if n == 11:
            a("s_barrier"); stamp('M', 'R2')
        if m == 32:
            stamp('M', 'preW3'); a("s_barrier"); stamp('M', 'W3')
        if 8 <= m < 44: rdW2(m)
        if n + DH == 32:
            check('pollB', 2, 'B')
        if n + DH < 44: ldH(n + DH)
    a(f"""
    L_g2done:
    s_lshl_b32 s68, s{sCG}, 6
    s_lshl_b32 s69, s{sTH}, 5
    s_add_u32 s68, s68, s69
    v_and_b32 v6, 31, v0
    v_add_u32 v6, s68, v6
    v_mul_u32_u24 v6, 272, v6
    v_lshl_add_u32 v6, v10, 4, v6
    v_add_u32 v6, {S1}, v6
    s_nop 4
    """)
    stamp('M', 'G2done')
    for ct in range(2):
        for rg in range(4):
            a(f"ds_write_b128 v6, {vr(A2+16*ct+4*rg,4)} offset:{128*ct+32*rg}")
    a("s_waitcnt lgkmcnt(0)")
    stamp('M', 'preE')
    a("s_barrier")
    dump('M')
    a("L_end:\ns_endpgm")
    body = a.finish()
    hdr = open('cdna_kernels/' + NAME + '.s.ref').read().split('; Override launch')[0]
    txt = hdr + f"""; Single persistent launch: 256 workgroups (one per CU) x 8 waves (4 conv/loader waves + 4 MLP waves).
; Generated by gen/gen.py
; @launch grid=(256,1,1) block=(512,1,1) lds=163840
.amdgcn_target "amdgcn-amd-amdhsa--gfx950"
.text
.globl {NAME}_kernel
.p2align 8
.type {NAME}_kernel,@function
{NAME}_kernel:
{body}
.section .rodata,"a"
.p2align 6
.amdhsa_kernel {NAME}_kernel
  .amdhsa_next_free_vgpr 256
  .amdhsa_next_free_sgpr 102
  .amdhsa_accum_offset 256
  .amdhsa_group_segment_fixed_size 0
  .amdhsa_kernarg_size 112
  .amdhsa_user_sgpr_count 2
  .amdhsa_user_sgpr_kernarg_segment_ptr 1
  .amdhsa_system_sgpr_workgroup_id_x 1
.end_amdhsa_kernel
"""
    return txt, names

if __name__ == '__main__':
    import json
    txt, _ = gen(False)
    open('cdna_kernels/' + NAME + '.s', 'w').write(txt)
    txt, names = gen(True)
    open('diag.s', 'w').write(txt)
    json.dump(names, open('diag_names.json', 'w'))
```
